```python
import torch

def _softmax(x, axis=-1):
    return torch.softmax(x, dim=axis)
def _gelu(x):
    return torch.nn.functional.gelu(x, approximate="tanh")
def _silu(x):
    return torch.nn.functional.silu(x)
def _sigmoid(x):
    return torch.sigmoid(x)
def _layernorm(x, axis=-1, eps=1e-5):
    m = x.mean(dim=axis, keepdim=True)
    v = x.var(dim=axis, keepdim=True, unbiased=False)
    return (x - m) / torch.sqrt(v + eps)
def _scatter_add(tgt, idx, src, axis=0):
    return tgt.clone().index_add_(axis, idx, src)
def _segment_sum(src, seg, n):
    out = torch.zeros((n,) + src.shape[1:], dtype=src.dtype)
    return out.index_add_(0, seg, src)
def _pad(x, pw):
    flat = tuple(v for pair in reversed(pw) for v in pair)
    return torch.nn.functional.pad(x, flat)

kernel_name = 'sequential_preLN__linear_kernel_hedgehog__mixer_channel_mlp__prompt'

def setup_inputs():

    _w = (lambda a: (lambda t: t.to(torch.bfloat16) if t.is_floating_point() else t)(torch.as_tensor(a)))
    def _A_setup():
        B, S, D, H = 1, 2048, 448, 16
        Dh = D // H
        return {
            "x": _w((lambda *s: torch.randn(*s, dtype=torch.bfloat16) * 0.05)(B, S, D)),
            "wqkv": _w((lambda *s: torch.randn(*s, dtype=torch.bfloat16) * 0.2)(D, 3 * D)),
            "w_phi": _w((lambda *s: torch.randn(*s, dtype=torch.bfloat16) * 0.2)(H, Dh, Dh) * (Dh ** -0.5)),
            "wo": _w((lambda *s: torch.randn(*s, dtype=torch.bfloat16) * 0.05)(D, D)),
        }
    _A_in = _A_setup()

    def _B_setup():
        B, S, D, F = 1, 2048, 448, 1792
        return {
            "x": _w((lambda *s: torch.randn(*s, dtype=torch.bfloat16) * 0.05)(B, S, D)),
            "w1": _w((lambda *s: torch.randn(*s, dtype=torch.bfloat16) * 3.2)(D, F) * (D ** -0.5)),
            "b1": _w((lambda *s: torch.randn(*s, dtype=torch.bfloat16) * 0.8)(F)),
            "w2": _w((lambda *s: torch.randn(*s, dtype=torch.bfloat16) * 0.1)(F, D) * (F ** -0.5)),
            "b2": _w((lambda *s: torch.randn(*s, dtype=torch.bfloat16) * 0.1)(D)),
        }
    _B_in = _B_setup()

    return {
        "A_x": _A_in["x"],
        "A_wqkv": _A_in["wqkv"],
        "A_w_phi": _A_in["w_phi"],
        "A_wo": _A_in["wo"],
        "B_x": _B_in["x"],
        "B_w1": _B_in["w1"],
        "B_b1": _B_in["b1"],
        "B_w2": _B_in["w2"],
        "B_b2": _B_in["b2"],
    }

def reference(A_x, A_wqkv, A_w_phi, A_wo, B_x, B_w1, B_b1, B_w2, B_b2):
    def _A_ref(x, wqkv, w_phi, wo):
        B, S, D = x.shape
        H = 16; Dh = D // H
        qkv = (lambda x, *d: x.permute(*d))((x @ wqkv).reshape(B, S, 3, H, Dh), 2, 0, 3, 1, 4)
        q, k, v = qkv[0], qkv[1], qkv[2]
        pq = torch.einsum("bhsd,hdf->bhsf", q, w_phi)
        pk = torch.einsum("bhsd,hdf->bhsf", k, w_phi)
        phi_q = torch.concatenate([_softmax(pq, axis=-1), _softmax(-pq, axis=-1)], axis=-1)
        phi_k = torch.concatenate([_softmax(pk, axis=-1), _softmax(-pk, axis=-1)], axis=-1)
        kv = torch.einsum("bhsf,bhsd->bhfd", phi_k, v)
        z  = torch.einsum("bhsf->bhf", phi_k)
        num = torch.einsum("bhqf,bhfd->bhqd", phi_q, kv)
        den = torch.einsum("bhqf,bhf->bhq", phi_q, z)[..., None] + 1e-6
        o = num / den
        return (lambda x, *d: x.permute(*d))(o, 0, 2, 1, 3).reshape(B, S, D) @ wo

    def _B_ref(x, w1, b1, w2, b2):
        y = _layernorm(x, axis=-1)
        h = _gelu(torch.einsum("bsd,df->bsf", y, w1) + b1)
        return torch.einsum("bsf,fd->bsd", h, w2) + b2

    x = A_x
    h = x + _A_ref(_layernorm(x, axis=-1), A_wqkv, A_w_phi, A_wo)
    h2 = h + _B_ref(_layernorm(h, axis=-1), B_w1, B_b1, B_w2, B_b2)
    return h2
```

```python
import sys
NAME="sequential_preLN__linear_kernel_hedgehog__mixer_channel_mlp__prompt"
R_=int(sys.argv[1]); depth=int(sys.argv[2]); gm=int(sys.argv[3]); jit=int(sys.argv[4]); out=sys.argv[5]
R=16
FL=0x80000
s=f"""; @launch grid=(256,1,1) block=(256,1,1) lds=163840
.amdgcn_target "amdgcn-amd-amdhsa--gfx950"
.text
.globl {NAME}_kernel
.p2align 8
.type {NAME}_kernel,@function
{NAME}_kernel:
    s_load_dwordx2 s[28:29], s[0:1], 88
    s_load_dwordx2 s[24:25], s[0:1], 80
    v_lshrrev_b32 v1, 6, v0
    v_and_b32 v2, 63, v0
    s_nop 0
    v_readfirstlane_b32 s3, v1
"""
if gm: s+="    s_and_b32 s30, s2, 15\n    s_lshr_b32 s31, s2, 4\n"
else: s+="    s_and_b32 s31, s2, 15\n    s_lshr_b32 s30, s2, 4\n"
s+=f"""
    s_waitcnt lgkmcnt(0)
    s_mov_b32 s16, s28
    s_mov_b32 s17, s29
    s_mov_b32 s18, 0x10000000
    s_mov_b32 s19, 0x00020000
    s_mov_b32 s50, 0
    s_mov_b32 s53, 0
    s_lshl_b32 s20, s30, 2
    s_add_u32 s20, s20, s3
    s_lshl_b32 s40, s20, 9
    s_add_u32 s40, s40, {FL}
    s_and_b32 s41, s31, {R_-1}
    s_lshl_b32 s41, s41, 7
    s_add_u32 s41, s41, s40
    s_lshl_b32 s33, s2, 9
    s_lshl_b32 s34, s3, 7
    s_add_u32 s33, s33, s34
    v_lshlrev_b32 v3, 7, v2
    v_mov_b32 v4, 1
    v_mov_b32 v10, 0
    s_mov_b64 exec, 15
    buffer_store_dword v10, v3, s[16:19], s40 offen sc1
    s_mov_b64 exec, -1
    s_waitcnt vmcnt(0)
    s_mov_b32 s26, 256
    s_mov_b32 s27, 0x00020000
    s_barrier
    v_mov_b32 v9, s2
    v_mov_b32 v10, 1
    v_cmp_eq_u32 vcc, 0, v0
    s_and_saveexec_b64 s[36:37], vcc
    buffer_store_byte v10, v9, s[24:27], 0 offen sc1
    s_mov_b64 exec, -1
    v_lshlrev_b32 v9, 2, v2
    s_mov_b32 s52, 0
L_gb:
    buffer_load_dword v10, v9, s[24:27], 0 offen sc1
    s_waitcnt vmcnt(0)
    v_cmp_ne_u32 vcc, 0x01010101, v10
    s_cbranch_vccz L_gbok
    s_add_u32 s52, s52, 1
    s_sleep 2
    s_cmp_lt_u32 s52, 100000
    s_cbranch_scc1 L_gb
L_gbok:
    v_mov_b32 v220, 0
    v_mov_b32 v221, 0
    s_mov_b32 s56, 0
    s_mov_b32 s57, 0
    s_mul_i32 s60, s2, 2654435761
    s_add_u32 s60, s60, s3
L_round:
    s_mul_i32 s60, s60, 1664525
    s_add_u32 s60, s60, 1013904223
    s_lshr_b32 s61, s60, 20
    s_and_b32 s61, s61, {jit}
L_j:
    s_cmp_eq_u32 s61, 0
    s_cbranch_scc1 L_jd
    s_sleep 1
    s_sub_u32 s61, s61, 1
    s_branch L_j
L_jd:
    s_memrealtime s[44:45]
    s_add_u32 s54, s50, 1
    s_lshl_b32 s54, s54, 4
    s_mov_b64 exec, {(1<<R_)-1}
    buffer_atomic_add v4, v3, s[16:19], s40 offen
    s_mov_b64 exec, -1
    s_waitcnt lgkmcnt(0)
"""
if depth==1:
    s+="""L_poll:
    s_atomic_umax s56, s[28:29], s41 glc
    s_add_u32 s53, s53, 1
    s_waitcnt lgkmcnt(0)
    s_cmp_ge_u32 s56, s54
    s_cbranch_scc1 L_pok
    s_cmp_lt_u32 s53, 20000
    s_cbranch_scc1 L_poll
L_pok:
"""
else:
    s+="""    s_atomic_umax s56, s[28:29], s41 glc
    s_sleep 6
L_poll:
    s_atomic_umax s57, s[28:29], s41 glc
    s_add_u32 s53, s53, 1
    s_waitcnt lgkmcnt(1)
    s_max_u32 s58, s56, s57
    s_cmp_ge_u32 s58, s54
    s_cbranch_scc1 L_pok
    s_atomic_umax s56, s[28:29], s41 glc
    s_waitcnt lgkmcnt(1)
    s_max_u32 s58, s56, s57
    s_cmp_ge_u32 s58, s54
    s_cbranch_scc1 L_pok
    s_cmp_lt_u32 s53, 20000
    s_cbranch_scc1 L_poll
L_pok:
"""
s+=f"""
    s_memrealtime s[46:47]
    s_waitcnt lgkmcnt(0)
    s_mov_b32 m0, s50
    s_nop 0
    v_writelane_b32 v220, s44, m0
    v_writelane_b32 v221, s46, m0
    s_add_u32 s50, s50, 1
    s_cmp_lt_u32 s50, {R}
    s_cbranch_scc1 L_round
    v_lshlrev_b32 v9, 2, v2
    s_mov_b64 exec, 0xffff
    buffer_store_dword v220, v9, s[16:19], s33 offen
    buffer_store_dword v221, v9, s[16:19], s33 offen offset:64
    s_waitcnt vmcnt(0)
    s_endpgm
.section .rodata,"a"
.p2align 6
.amdhsa_kernel {NAME}_kernel
  .amdhsa_next_free_vgpr 256
  .amdhsa_next_free_sgpr 80
  .amdhsa_accum_offset 256
  .amdhsa_group_segment_fixed_size 0
  .amdhsa_kernarg_size 96
  .amdhsa_user_sgpr_count 2
  .amdhsa_user_sgpr_kernarg_segment_ptr 1
  .amdhsa_system_sgpr_workgroup_id_x 1
.end_amdhsa_kernel
"""
open(out,"w").write(s)
```
